```python
import torch

def _softmax(x, axis=-1):
    return torch.softmax(x, dim=axis)
def _gelu(x):
    return torch.nn.functional.gelu(x, approximate="tanh")
def _silu(x):
    return torch.nn.functional.silu(x)
def _sigmoid(x):
    return torch.sigmoid(x)
def _layernorm(x, axis=-1, eps=1e-5):
    m = x.mean(dim=axis, keepdim=True)
    v = x.var(dim=axis, keepdim=True, unbiased=False)
    return (x - m) / torch.sqrt(v + eps)
def _scatter_add(tgt, idx, src, axis=0):
    return tgt.clone().index_add_(axis, idx, src)
def _segment_sum(src, seg, n):
    out = torch.zeros((n,) + src.shape[1:], dtype=src.dtype)
    return out.index_add_(0, seg, src)
def _pad(x, pw):
    flat = tuple(v for pair in reversed(pw) for v in pair)
    return torch.nn.functional.pad(x, flat)

kernel_name = 'recurrent_scan__ssm_conv_h3__dense_activation_silu__prompt'

def setup_inputs():

    _w = (lambda a: (lambda t: t.to(torch.bfloat16) if t.is_floating_point() else t)(torch.as_tensor(a)))
    def _A_setup():
        B, S, D = 1, 2048, 640
        ks = 4
        return {
            "q": _w((lambda *s: torch.randn(*s, dtype=torch.bfloat16) * 0.05)(B, S, D)),
            "k": _w((lambda *s: torch.randn(*s, dtype=torch.bfloat16) * 0.8)(B, S, D)),
            "v": _w((lambda *s: torch.randn(*s, dtype=torch.bfloat16) * 0.8)(B, S, D)),
            "shift_k": _w((lambda *s: torch.randn(*s, dtype=torch.bfloat16) * 0.8)(D, ks) * 0.5),
            "ssm_k": _w((lambda *s: torch.randn(*s, dtype=torch.bfloat16) * 0.8)(D, S) * (1.0 / S ** 0.5)),
            "ssm_D": _w((lambda *s: torch.randn(*s, dtype=torch.bfloat16) * 0.8)(D)),
        }
    _A_in = _A_setup()

    def _B_setup():
        B, S, D, F = 1, 2048, 640, 1728
        return {
            "x": _w((lambda *s: torch.randn(*s, dtype=torch.bfloat16) * 0.05)(B, S, D)),
            "w1": _w((lambda *s: torch.randn(*s, dtype=torch.bfloat16) * 0.8)(D, F) * (D ** -0.5)),
            "w2": _w((lambda *s: torch.randn(*s, dtype=torch.bfloat16) * 0.2)(F, D) * (F ** -0.5)),
        }
    _B_in = _B_setup()

    return {
        "A_q": _A_in["q"],
        "A_k": _A_in["k"],
        "A_v": _A_in["v"],
        "A_shift_k": _A_in["shift_k"],
        "A_ssm_k": _A_in["ssm_k"],
        "A_ssm_D": _A_in["ssm_D"],
        "B_x": _B_in["x"],
        "B_w1": _B_in["w1"],
        "B_w2": _B_in["w2"],
    }

def reference(A_q, A_k, A_v, A_shift_k, A_ssm_k, A_ssm_D, B_x, B_w1, B_w2):
    def _A_ref(q, k, v, shift_k, ssm_k, ssm_D):
        B, S, D = q.shape
        ks = shift_k.shape[-1]
        k_pad = _pad(k, ((0, 0), (ks - 1, 0), (0, 0)))
        k_shift = torch.zeros_like(k)
        for t in range(ks):
            k_shift = k_shift + k_pad[:, t:t + S, :] * shift_k[:, ks - 1 - t][None, None, :]
        kv = k_shift * v
        L = 2 * S
        kv_pad = _pad(kv, ((0, 0), (0, S), (0, 0)))
        kf_pad = _pad(ssm_k, ((0, 0), (0, S)))
        kv_f = (lambda x, axes=(-2,-1): torch.fft.rfft2(x.float(), dim=axes))(kv_pad[:, None, :, :], axes=(1, 2))
        kf_f = (lambda x, axes=(-2,-1): torch.fft.rfft2(x.float(), dim=axes))(kf_pad[:, None, :], axes=(1, 2))
        kf_f = (lambda x, *d: x.permute(*d))(kf_f, 1, 2, 0)
        y_f = kv_f * kf_f[None, :, :, :]
        y = (lambda x, s, axes=(-2,-1): torch.fft.irfft2(x, s=s, dim=axes).to(torch.bfloat16))(y_f, (1, L), axes=(1, 2))[:, 0, :S, :]
        y = y + kv * ssm_D[None, None, :]
        return q * y

    def _B_ref(x, w1, w2):
        h = torch.einsum("bsd,df->bsf", x, w1)
        h = _silu(h)
        out = torch.einsum("bsf,fd->bsd", h, w2)
        return out

    x = A_q
    xn = _layernorm(x, axis=-1)
    s = _A_ref(xn, A_k, A_v, A_shift_k, A_ssm_k, A_ssm_D)
    g = _silu(_B_ref(xn, B_w1, B_w2))
    return x + s * g
```

```python
import sys

NAME = "recurrent_scan__ssm_conv_h3__dense_activation_silu__prompt"
WS_HF, WS_W2F, WS_UR, WS_YT, WS_STATS, WS_CS = 0, 0x700000, 0xA00000, 0xD00000, 0x1000000, 0x1010000
WS_SIZE = 0x1100000


class A:
    def __init__(self):
        self.l = []
        self.n = 0

    def __call__(self, s):
        for line in s.strip("\n").split("\n"):
            self.l.append("    " + line.strip())

    def label(self, s):
        self.l.append(s + ":")

    def newlabel(self, p="L"):
        self.n += 1
        return f"{p}_{self.n}"

    def text(self):
        return "\n".join(self.l) + "\n"


def vr(b, n=4):
    return f"v[{b}:{b+n-1}]"


def srd(a, s, lo, nbytes):
    a(f"s_mov_b32 s{s}, s{lo}")
    a(f"s_and_b32 s{s+1}, s{lo+1}, 0xffff")
    a(f"s_mov_b32 s{s+2}, {nbytes}")
    a(f"s_mov_b32 s{s+3}, 0x00020000")


P_Q, P_K, P_V, P_SH, P_SK, P_SD, P_BX, P_W1 = 4, 6, 8, 10, 12, 14, 16, 18
P_W2, P_OUT, P_DBG, P_WS = 20, 22, 24, 26
SX, SK, SV, SSH, SW1, SW2, SWS, SDBG = 28, 32, 36, 40, 44, 48, 52, 56


def load_ptrs(a):
    a("s_load_dwordx16 s[4:19], s[0:1], 0")
    a("s_load_dwordx8 s[20:27], s[0:1], 64")


def round_bf16(a, dst, src):
    a(f"v_cvt_pk_bf16_f32 v{dst}, v{src}, v{src}")
    a(f"v_lshlrev_b32 v{dst}, 16, v{dst}")


def k1_prep(a):
    vL, vT0, vT1, vT2, vT3, vT4, vT5 = 1, 2, 3, 4, 5, 6, 7
    vAD = 8
    RAWX, RAWC, RAWS, RAWK, RAWV = 16, 36, 56, 72, 116
    XF, CSA = 148, 188
    KF, WF, OUT, UT = 148, 16, 72, 236
    sW, sP, sT0, sT1, sT2, sT3 = 60, 61, 62, 63, 64, 65
    LDS_PART = 42240
    srd(a, SX, P_Q, 2621440)
    srd(a, SK, P_K, 2621440)
    srd(a, SV, P_V, 2621440)
    srd(a, SSH, P_SH, 5120)
    srd(a, SW1, P_W1, 2211840)
    srd(a, SW2, P_W2, 2211840)
    srd(a, SWS, P_WS, WS_SIZE)
    srd(a, SDBG, P_DBG, 256)
    a(f"""
    v_and_b32 v{vL}, 63, v0
    v_lshrrev_b32 v{vT0}, 6, v0
    s_nop 0
    v_readfirstlane_b32 s{sW}, v{vT0}
    s_cmp_ge_u32 s2, 54
    s_cselect_b32 s{sT0}, 54, 0
    s_sub_u32 s{sP}, s2, s{sT0}          ; p' = p<54 ? p : p-54
    """)
    a(f"""
    v_lshrrev_b32 v{vT0}, 4, v0
    s_lshl_b32 s{sT0}, s2, 5
    v_add_u32 v{vT0}, s{sT0}, v{vT0}       ; row
    v_mul_u32_u24 v{vT1}, 1280, v{vT0}
    v_and_b32 v{vT2}, 15, v0
    v_lshl_add_u32 v{vT1}, v{vT2}, 4, v{vT1}
    v_lshlrev_b32 v{vAD}, 3, v{vT0}
    """)
    for i in range(5):
        a(f"buffer_load_dwordx4 {vr(RAWX+4*i)}, v{vT1}, s[{SX}:{SX+3}], 0 offen offset:{256*i}")
    a(f"""
    v_lshrrev_b32 v{vT0}, 2, v0
    v_mul_u32_u24 v{vT1}, 3456, v{vT0}
    v_and_b32 v{vT2}, 3, v0
    v_lshl_add_u32 v{vT1}, v{vT2}, 4, v{vT1}
    s_lshl_b32 s{sT0}, s{sP}, 6
    """)
    for i in range(5):
        a(f"buffer_load_dwordx4 {vr(RAWC+4*i)}, v{vT1}, s[{SW1}:{SW1+3}], s{sT0} offen")
        if i < 4:
            a(f"s_add_u32 s{sT0}, s{sT0}, {128*3456}")

    LB = a.newlabel("prepB")
    a(f"s_cmp_ge_u32 s{sW}, 5")
    a(f"s_cbranch_scc1 {LB}")

    def stats_and_colsum(nafter):
        a(f"s_waitcnt vmcnt({nafter+5})")
        for i in range(20):
            a(f"v_lshlrev_b32 v{XF+2*i}, 16, v{RAWX+i}")
            a(f"v_and_b32 v{XF+2*i+1}, 0xffff0000, v{RAWX+i}")
        a(f"v_add_f32 v{vT0}, v{XF}, v{XF+1}")
        a(f"v_add_f32 v{vT1}, v{XF+2}, v{XF+3}")
        a(f"v_add_f32 v{vT2}, v{XF+4}, v{XF+5}")
        a(f"v_add_f32 v{vT3}, v{XF+6}, v{XF+7}")
        for i in range(8, 40, 4):
            a(f"v_add_f32 v{vT0}, v{vT0}, v{XF+i}")
            a(f"v_add_f32 v{vT1}, v{vT1}, v{XF+i+1}")
            a(f"v_add_f32 v{vT2}, v{vT2}, v{XF+i+2}")
            a(f"v_add_f32 v{vT3}, v{vT3}, v{XF+i+3}")
        a(f"v_add_f32 v{vT0}, v{vT0}, v{vT1}")
        a(f"v_add_f32 v{vT2}, v{vT2}, v{vT3}")
        a(f"v_add_f32 v{vT0}, v{vT0}, v{vT2}")
        for sh in (1, 2, 4, 8):
            a("s_nop 1")
            a(f"v_add_f32_dpp v{vT0}, v{vT0}, v{vT0} row_ror:{sh} row_mask:0xf bank_mask:0xf")
        a(f"v_mul_f32 v{vT0}, 0x3acccccd, v{vT0}")
        for i in range(40):
            a(f"v_sub_f32 v{XF+i}, v{XF+i}, v{vT0}")
        a(f"v_mul_f32 v{vT1}, v{XF}, v{XF}")
        a(f"v_mul_f32 v{vT2}, v{XF+1}, v{XF+1}")
        a(f"v_mul_f32 v{vT3}, v{XF+2}, v{XF+2}")
        a(f"v_mul_f32 v{vT4}, v{XF+3}, v{XF+3}")
        for i in range(4, 40, 4):
            a(f"v_fmac_f32 v{vT1}, v{XF+i}, v{XF+i}")
            a(f"v_fmac_f32 v{vT2}, v{XF+i+1}, v{XF+i+1}")
            a(f"v_fmac_f32 v{vT3}, v{XF+i+2}, v{XF+i+2}")
            a(f"v_fmac_f32 v{vT4}, v{XF+i+3}, v{XF+i+3}")
        a(f"v_add_f32 v{vT1}, v{vT1}, v{vT2}")
        a(f"v_add_f32 v{vT3}, v{vT3}, v{vT4}")
        a(f"v_add_f32 v{vT1}, v{vT1}, v{vT3}")
        for sh in (1, 2, 4, 8):
            a("s_nop 1")
            a(f"v_add_f32_dpp v{vT1}, v{vT1}, v{vT1} row_ror:{sh} row_mask:0xf bank_mask:0xf")
        a(f"v_mul_f32 v{vT1}, 0x3acccccd, v{vT1}     ; var")
        round_bf16(a, vT2, vT0)
        round_bf16(a, vT1, vT1)
        a(f"v_add_f32 v{vT1}, 0x3727c5ac, v{vT1}     ; + 1e-5")
        round_bf16(a, vT1, vT1)
        a(f"v_sqrt_f32 v{vT1}, v{vT1}")
        a("s_nop 0")
        round_bf16(a, vT1, vT1)
        a(f"v_rcp_f32 v{vT3}, v{vT1}")
        a(f"v_and_b32 v{vT4}, 15, v0")
        a(f"v_cmp_eq_u32 vcc, 0, v{vT4}")
        a(f"s_mov_b32 s{sT0}, {WS_STATS}")
        a(f"s_and_saveexec_b64 s[66:67], vcc")
        a(f"buffer_store_dwordx2 v[{vT2}:{vT3}], v{vAD}, s[{SWS}:{SWS+3}], s{sT0} offen sc0 sc1")
        a(f"s_mov_b64 exec, s[66:67]")
        a(f"s_waitcnt vmcnt({nafter+1})")
        for d in range(4):
            a(f"v_lshlrev_b32 v{CSA+2*d}, 16, v{RAWC+d}")
            a(f"v_and_b32 v{CSA+2*d+1}, 0xffff0000, v{RAWC+d}")
        for i in range(1, 5):
            for d in range(4):
                a(f"v_lshlrev_b32 v{vT0}, 16, v{RAWC+4*i+d}")
                a(f"v_and_b32 v{vT1}, 0xffff0000, v{RAWC+4*i+d}")
                a(f"v_add_f32 v{CSA+2*d}, v{CSA+2*d}, v{vT0}")
                a(f"v_add_f32 v{CSA+2*d+1}, v{CSA+2*d+1}, v{vT1}")
        for sh in (4, 8):
            a("s_nop 1")
            for d in range(8):
                a(f"v_add_f32_dpp v{CSA+d}, v{CSA+d}, v{CSA+d} row_ror:{sh} row_mask:0xf bank_mask:0xf")
        a(f"""
        v_lshrrev_b32 v{vT0}, 4, v0
        v_lshlrev_b32 v{vT0}, 7, v{vT0}
        v_and_b32 v{vT1}, 15, v0
        v_lshl_add_u32 v{vT0}, v{vT1}, 5, v{vT0}
        v_cmp_gt_u32 vcc, 4, v{vT1}
        s_and_saveexec_b64 s[66:67], vcc
        ds_write_b128 v{vT0}, {vr(CSA)} offset:{LDS_PART}
        ds_write_b128 v{vT0}, {vr(CSA+4)} offset:{LDS_PART+16}
        s_mov_b64 exec, s[66:67]
        s_waitcnt lgkmcnt(0)
        s_barrier
        """)

    def publish():
        a(f"""
        s_waitcnt vmcnt(0)
        s_barrier
        """)

    a(f"""
    s_mul_i32 s{sT0}, s2, 5
    s_add_u32 s{sT0}, s{sT0}, s{sW}          ; W
    s_mul_i32 s{sT1}, s{sT0}, 6554
    s_lshr_b32 s{sT1}, s{sT1}, 16            ; tb64
    s_mul_i32 s{sT2}, s{sT1}, 10
    s_sub_u32 s{sT2}, s{sT0}, s{sT2}         ; db64
    v_lshrrev_b32 v{vT0}, 3, v{vL}           ; tb
    v_and_b32 v{vT1}, 7, v{vL}               ; dc
    s_lshl_b32 s{sT3}, s{sT1}, 3
    v_add_u32 v{vT0}, s{sT3}, v{vT0}         ; t0/8
    s_lshl_b32 s{sT3}, s{sT2}, 3
    v_add_u32 v{vT1}, s{sT3}, v{vT1}
    v_lshlrev_b32 v{vT2}, 6, v{vT1}
    v_mul_u32_u24 v{vT3}, 10240, v{vT0}      ; t0*1280
    v_lshl_add_u32 v{vT3}, v{vT1}, 4, v{vT3} ; + chunk*16
    v_lshlrev_b32 v9, 15, v{vT1}
    v_lshlrev_b32 v{vT4}, 4, v{vT0}
    v_sub_u32 v9, v9, v{vT4}
    v_add_u32 v9, 4080, v9
    """)
    for i in range(4):
        a(f"buffer_load_dwordx4 {vr(RAWS+4*i)}, v{vT2}, s[{SSH}:{SSH+3}], 0 offen offset:{16*i}")
    for r in range(11):
        a(f"v_add_u32 v{vT4}, {(r-3)*1280 & 0xffffffff}, v{vT3}")
        a(f"buffer_load_dwordx4 {vr(RAWK+4*r)}, v{vT4}, s[{SK}:{SK+3}], 0 offen")
    for r in range(8):
        a(f"v_add_u32 v{vT4}, {r*1280}, v{vT3}")
        a(f"buffer_load_dwordx4 {vr(RAWV+4*r)}, v{vT4}, s[{SV}:{SV+3}], 0 offen")
    stats_and_colsum(23)
    LA1 = a.newlabel("prepA1")
    a(f"""
    s_cmp_lg_u32 s{sW}, 0
    s_cbranch_scc1 {LA1}
    v_and_b32 v{vT5}, 31, v{vL}
    v_lshlrev_b32 v{vT5}, 2, v{vT5}
    """)
    for i in range(32):
        a(f"ds_read_b32 v{XF+i}, v{vT5} offset:{LDS_PART+128*i}")
    a("s_waitcnt lgkmcnt(0)")
    for st in (16, 8, 4, 2, 1):
        for i in range(st):
            a(f"v_add_f32 v{XF+i}, v{XF+i}, v{XF+i+st}")
    a(f"""
    s_lshl_b32 s{sT0}, s{sP}, 7
    s_add_u32 s{sT0}, s{sT0}, {WS_CS}
    v_cmp_gt_u32 vcc, 32, v{vL}
    s_and_saveexec_b64 s[66:67], vcc
    buffer_store_dword v{XF}, v{vT5}, s[{SWS}:{SWS+3}], s{sT0} offen sc0 sc1
    s_mov_b64 exec, s[66:67]
    """)
    a.label(LA1)
    publish()
    LA2 = a.newlabel("prepA2")
    a(f"""
    s_cmp_lg_u32 s{sW}, 0
    s_cbranch_scc1 {LA2}
    v_mov_b32 v{vT0}, 1
    v_mov_b32 v{vT1}, 0
    v_cmp_eq_u32 vcc, 0, v{vL}
    s_and_saveexec_b64 s[66:67], vcc
    buffer_atomic_add v{vT0}, v{vT1}, s[{SDBG}:{SDBG+3}], 0 offen sc1
    s_mov_b64 exec, s[66:67]
    """)
    a.label(LA2)
    for ch in range(8):
        for jp in range(2):
            a(f"v_lshlrev_b32 v{WF+8*(2*jp)+ch}, 16, v{RAWS+2*ch+jp}")
            a(f"v_and_b32 v{WF+8*(2*jp+1)+ch}, 0xffff0000, v{RAWS+2*ch+jp}")
    for r in range(11):
        for d in range(4):
            a(f"v_lshlrev_b32 v{KF+8*r+2*d}, 16, v{RAWK+4*r+d}")
            a(f"v_and_b32 v{KF+8*r+2*d+1}, 0xffff0000, v{RAWK+4*r+d}")
    for i in range(4):
        for sub in range(2):
            r = 7 - 2 * i - sub
            U = UT + 8 * sub
            for d in range(4):
                u = f"v[{U+2*d}:{U+2*d+1}]"
                kf = lambda rr: f"v[{KF+8*(rr+3)+2*d}:{KF+8*(rr+3)+2*d+1}]"
                wf = lambda j: f"v[{WF+8*j+2*d}:{WF+8*j+2*d+1}]"
                a(f"v_pk_mul_f32 {u}, {kf(r-3)}, {wf(3)}")
                a(f"v_pk_fma_f32 {u}, {kf(r-2)}, {wf(2)}, {u}")
                a(f"v_pk_fma_f32 {u}, {kf(r-1)}, {wf(1)}, {u}")
                a(f"v_pk_fma_f32 {u}, {kf(r)}, {wf(0)}, {u}")
                a(f"v_lshlrev_b32 v{vT0}, 16, v{RAWV+4*r+d}")
                a(f"v_and_b32 v{vT1}, 0xffff0000, v{RAWV+4*r+d}")
                a(f"v_pk_mul_f32 {u}, {u}, v[{vT0}:{vT1}]")
        for ch in range(8):
            a(f"v_cvt_pk_bf16_f32 v{OUT+4*ch+i}, v{UT+ch}, v{UT+8+ch}")
    a(f"s_mov_b32 s{sT0}, {WS_UR}")
    for ch in range(8):
        a(f"buffer_store_dwordx4 {vr(OUT+4*ch)}, v9, s[{SWS}:{SWS+3}], s{sT0} offen")
        if ch < 7:
            a(f"s_add_u32 s{sT0}, s{sT0}, 4096")
    a("s_endpgm")

    a.label(LB)
    a(f"""
    s_sub_u32 s{sT3}, s{sW}, 5               ; wb
    s_mul_i32 s{sT1}, s{sP}, 40960
    s_lshl_b32 s{sT0}, s{sT3}, 6
    v_add_u32 v{vT5}, s{sT0}, v{vL}
    s_lshl_b32 s{sT2}, s{sT3}, 10            ; m0 = 1024*wb (+3072 j)
    """)
    LBs = a.newlabel("prepBskip")
    for j in range(14):
        if j == 13:
            a(f"s_cmp_ge_u32 s{sT3}, 2")
            a(f"s_cbranch_scc1 {LBs}")
        a(f"""
        v_mul_u32_u24 v{vT0}, 51151, v{vT5}
        v_lshrrev_b32 v{vT0}, 22, v{vT0}         ; prow
        v_mul_u32_u24 v{vT1}, 82, v{vT0}
        v_sub_u32 v{vT1}, v{vT5}, v{vT1}         ; chunk
        v_min_u32 v{vT1}, 79, v{vT1}
        v_and_b32 v{vT2}, 0x13, v{vT0}
        v_and_b32 v{vT3}, 4, v{vT0}
        v_lshl_or_b32 v{vT2}, v{vT3}, 1, v{vT2}
        v_and_b32 v{vT3}, 8, v{vT0}
        v_lshrrev_b32 v{vT3}, 1, v{vT3}
        v_or_b32 v{vT2}, v{vT2}, v{vT3}          ; k
        v_mul_u32_u24 v{vT2}, 1280, v{vT2}
        v_lshl_add_u32 v{vT2}, v{vT1}, 4, v{vT2}
        s_mov_b32 m0, s{sT2}
        v_add_u32 v{vT5}, 192, v{vT5}
        buffer_load_dwordx4 v{vT2}, s[{SW2}:{SW2+3}], s{sT1} offen lds
        s_add_u32 s{sT2}, s{sT2}, 3072
        """)
    a.label(LBs)
    stats_and_colsum(13)
    publish()
    a(f"""
    v_lshrrev_b32 v{vT0}, 2, v{vL}
    v_and_b32 v{vT0}, 3, v{vT0}              ; r
    v_lshrrev_b32 v{vT1}, 4, v{vL}           ; kq
    v_and_b32 v{vT2}, 1, v{vT1}
    v_lshl_add_u32 v{vT0}, v{vT2}, 2, v{vT0}
    v_lshrrev_b32 v{vT1}, 1, v{vT1}
    v_lshl_add_u32 v{vT0}, v{vT1}, 4, v{vT0}
    v_mul_u32_u24 v{vT0}, 1312, v{vT0}
    v_and_b32 v{vT1}, 3, v{vL}
    v_lshl_add_u32 v{vT0}, v{vT1}, 3, v{vT0}
    s_lshl_b32 s{sT0}, s{sT3}, 5
    v_add_u32 v{vT0}, s{sT0}, v{vT0}
    v_lshlrev_b32 v{vT1}, 4, v{vL}
    s_lshl_b32 s{sT0}, s{sT3}, 10
    v_add_u32 v{vT1}, s{sT0}, v{vT1}
    s_add_u32 s{sT1}, s{sT1}, {WS_W2F}
    """)
    FR = 16
    for j in range(14):
        a(f"ds_read_b64_tr_b16 v[{FR+4*j}:{FR+4*j+1}], v{vT0} offset:{96*j}")
        a(f"ds_read_b64_tr_b16 v[{FR+4*j+2}:{FR+4*j+3}], v{vT0} offset:{96*j+10496}")
    a("s_waitcnt lgkmcnt(0)")
    LBe = a.newlabel("prepBend")
    for j in range(14):
        if j == 13:
            a(f"s_cmp_ge_u32 s{sT3}, 1")
            a(f"s_cbranch_scc1 {LBe}")
        a(f"buffer_store_dwordx4 {vr(FR+4*j)}, v{vT1}, s[{SWS}:{SWS+3}], s{sT1} offen")
        a(f"s_add_u32 s{sT1}, s{sT1}, 3072")
    a.label(LBe)
    a("s_endpgm")


SLOT = 34816
XPART = 16384


def k1_gemm1(a):
    vL = 1
    vT0, vT1, vT2, vT3, vT4, vT5 = 2, 3, 4, 5, 6, 7
    vXS = 8
    vWS = (9, 10, 11)
    vAW = (12, 13)
    vAW8 = (14, 15)
    vAX = ((16, 17), (18, 19))
    vFLAG = 20
    vST = 22
    vHS = 24
    vHS8 = 25
    vCSA, vCSA8 = 26, 27
    vZ = 28
    ACC = 32
    WFR = (104, 140)
    XFR = (176, 184)
    CSV = 192
    RCV = 104
    sW, sG, sWT, sMT, sNT, sODD = 60, 61, 62, 63, 64, 65
    sXo, sWo, sT0, sT1, sT2 = 66, 67, 68, 69, 70
    sM0x, sM0w = 72, 73
    srd(a, SX, P_Q, 2621440)
    srd(a, SW1, P_W1, 2211840)
    srd(a, SWS, P_WS, WS_SIZE)
    srd(a, SDBG, P_DBG, 256)
    a(f"""
    v_and_b32 v{vL}, 63, v0
    v_lshrrev_b32 v{vT0}, 6, v0
    s_nop 0
    v_readfirstlane_b32 s{sW}, v{vT0}
    s_and_b32 s{sT0}, s2, 7                  ; xcd
    s_sub_u32 s{sT1}, s2, 64
    s_lshr_b32 s{sT1}, s{sT1}, 3             ; idx 0..23
    s_lshr_b32 s{sMT}, s{sT0}, 1
    s_lshl_b32 s{sMT}, s{sMT}, 2
    s_and_b32 s{sT2}, s{sT1}, 3
    s_add_u32 s{sMT}, s{sMT}, s{sT2}         ; mt
    s_and_b32 s{sNT}, s{sT0}, 1
    s_mul_i32 s{sNT}, s{sNT}, 6
    s_lshr_b32 s{sT2}, s{sT1}, 2
    s_add_u32 s{sNT}, s{sNT}, s{sT2}         ; nt
    s_and_b32 s{sODD}, s{sNT}, 1
    s_lshr_b32 s{sG}, s{sW}, 2
    s_and_b32 s{sWT}, s{sW}, 3
    s_mul_i32 s{sXo}, s{sMT}, {128*1280}
    s_mul_i32 s{sWo}, s{sNT}, 288
    s_lshl_b32 s{sM0x}, s{sW}, 11            ; x dest: 2048*w
    s_lshl_b32 s{sM0w}, s{sW}, 10
    s_add_u32 s{sM0w}, s{sM0w}, {XPART}
    v_lshrrev_b32 v{vT0}, 3, v{vL}
    v_and_b32 v{vT1}, 7, v{vL}
    v_xor_b32 v{vT1}, v{vT1}, v{vT0}
    s_lshl_b32 s{sT0}, s{sW}, 4
    v_add_u32 v{vT0}, s{sT0}, v{vT0}
    v_mul_u32_u24 v{vXS}, 1280, v{vT0}
    v_lshl_add_u32 v{vXS}, v{vT1}, 4, v{vXS}
    """)
    for i in range(3):
        a(f"""
        v_add_u32 v{vT5}, {512*i}, v0            ; L = 64*(w+8i)+lane
        v_mul_u32_u24 v{vT0}, 3641, v{vT5}
        v_lshrrev_b32 v{vT0}, 16, v{vT0}         ; prow
        v_mul_u32_u24 v{vT1}, 18, v{vT0}
        v_sub_u32 v{vT1}, v{vT5}, v{vT1}         ; chunk
        v_and_b32 v{vT2}, 0x33, v{vT0}
        v_and_b32 v{vT3}, 4, v{vT0}
        v_lshl_or_b32 v{vT2}, v{vT3}, 1, v{vT2}
        v_and_b32 v{vT3}, 8, v{vT0}
        v_lshrrev_b32 v{vT3}, 1, v{vT3}
        v_or_b32 v{vT2}, v{vT2}, v{vT3}          ; k
        v_mul_u32_u24 v{vT2}, 3456, v{vT2}
        v_lshl_add_u32 v{vWS[i]}, v{vT1}, 4, v{vT2}
        """)

    def dma_stage(S):
        slot = (S % 4) * SLOT
        lab = a.newlabel("g1x")
        a(f"s_add_u32 s{sT0}, s{sWo}, {64*3456*S}")
        a(f"s_cmp_ge_u32 s{sW}, 2")
        a(f"s_cbranch_scc1 {lab}")
        a(f"s_add_u32 m0, s{sM0w}, {slot+16384}")
        a("s_nop 0")
        a(f"buffer_load_dwordx4 v{vWS[2]}, s[{SW1}:{SW1+3}], s{sT0} offen lds")
        a.label(lab)
        a(f"s_add_u32 m0, s{sM0w}, {slot}")
        a(f"s_add_u32 s{sT1}, s{sXo}, {128*S}")
        a(f"buffer_load_dwordx4 v{vWS[0]}, s[{SW1}:{SW1+3}], s{sT0} offen lds")
        a(f"s_add_u32 m0, s{sM0w}, {slot+8192}")
        a(f"s_add_u32 s{sT2}, s{sXo}, {128*S+10240}")
        a(f"buffer_load_dwordx4 v{vWS[1]}, s[{SW1}:{SW1+3}], s{sT0} offen lds")
        a(f"s_add_u32 m0, s{sM0x}, {slot}")
        a("s_nop 0")
        a(f"buffer_load_dwordx4 v{vXS}, s[{SX}:{SX+3}], s{sT1} offen lds")
        a(f"s_add_u32 m0, s{sM0x}, {slot+1024}")
        a("s_nop 0")
        a(f"buffer_load_dwordx4 v{vXS}, s[{SX}:{SX+3}], s{sT2} offen lds")

    for S in range(3):
        dma_stage(S)

    a(f"""
    v_lshrrev_b32 v{vT0}, 2, v{vL}
    v_and_b32 v{vT0}, 3, v{vT0}              ; r
    v_lshrrev_b32 v{vT1}, 4, v{vL}           ; kq
    v_and_b32 v{vT2}, 1, v{vT1}
    v_lshl_add_u32 v{vT0}, v{vT2}, 2, v{vT0}
    v_lshrrev_b32 v{vT2}, 1, v{vT1}
    v_lshl_add_u32 v{vT0}, v{vT2}, 4, v{vT0}
    v_mul_u32_u24 v{vT0}, 288, v{vT0}
    v_and_b32 v{vT2}, 3, v{vL}
    v_lshl_add_u32 v{vT0}, v{vT2}, 3, v{vT0}
    s_mul_i32 s{sT0}, s{sG}, 9216
    s_add_u32 s{sT0}, s{sT0}, {XPART}
    v_add_u32 v{vT0}, s{sT0}, v{vT0}         ; base
    s_lshl_b32 s{sT1}, s{sODD}, 5
    v_add_u32 v{vAW[0]}, s{sT1}, v{vT0}
    v_add_u32 v{vAW[1]}, {2*SLOT}, v{vAW[0]}
    s_lshl_b32 s{sT1}, s{sODD}, 8
    s_sub_u32 s{sT1}, 256, s{sT1}
    v_add_u32 v{vAW8[0]}, s{sT1}, v{vT0}
    v_add_u32 v{vAW8[1]}, {2*SLOT}, v{vAW8[0]}
    v_and_b32 v{vT2}, 15, v{vL}              ; n
    s_lshl_b32 s{sT0}, s{sG}, 2
    v_add_u32 v{vT3}, s{sT0}, v{vT1}         ; 4g+kq
    v_and_b32 v{vT4}, 7, v{vT2}
    v_xor_b32 v{vT3}, v{vT3}, v{vT4}
    v_lshlrev_b32 v{vT3}, 4, v{vT3}
    v_lshl_add_u32 v{vT3}, v{vT2}, 7, v{vT3}
    s_lshl_b32 s{sT0}, s{sWT}, 12
    s_lshl_b32 s{sT1}, s{sG}, 11
    s_add_u32 s{sT0}, s{sT0}, s{sT1}
    v_add_u32 v{vAX[0][0]}, s{sT0}, v{vT3}
    v_xor_b32 v{vAX[1][0]}, 2048, v{vAX[0][0]}
    v_add_u32 v{vAX[0][1]}, {2*SLOT}, v{vAX[0][0]}
    v_add_u32 v{vAX[1][1]}, {2*SLOT}, v{vAX[1][0]}
    v_mov_b32 v{vZ}, 0
    """)
    for i in range(72):
        a(f"v_mov_b32 v{ACC+i}, 0")

    def reads(S):
        slot = S % 4
        hi = slot >> 1
        so = (slot & 1) * SLOT
        W = WFR[S & 1]
        X = XFR[S & 1]
        r = []
        r.append(f"ds_read_b128 {vr(X)}, v{vAX[0][hi]} offset:{so}")
        r.append(f"ds_read_b128 {vr(X+4)}, v{vAX[1][hi]} offset:{so}")
        for T in range(9):
            base = vAW[hi] if T < 8 else vAW8[hi]
            off = so + (32 * T if T < 8 else 0)
            r.append(f"ds_read_b64_tr_b16 v[{W+4*T}:{W+4*T+1}], v{base} offset:{off}")
            r.append(f"ds_read_b64_tr_b16 v[{W+4*T+2}:{W+4*T+3}], v{base} offset:{off+2304}")
        return r

    def mfmas(S):
        W = WFR[S & 1]
        X = XFR[S & 1]
        r = []
        for T in range(9):
            for tt in range(2):
                c = ACC + 8 * T + 4 * tt
                r.append(f"v_mfma_f32_16x16x32_bf16 {vr(c)}, {vr(W+4*T)}, {vr(X+4*tt)}, {vr(c)}")
        return r

    a("s_waitcnt vmcnt(8)")
    a("s_barrier")
    for r in reads(0):
        a(r)
    NS = 10
    for S in range(NS):
        if S + 1 < NS:
            if S + 2 < NS:
                a("s_waitcnt vmcnt(4) lgkmcnt(0)")
            else:
                a("s_waitcnt vmcnt(0) lgkmcnt(0)")
            a("s_barrier")
            if S + 3 < NS:
                dma_stage(S + 3)
            if S == 7:
                a(f"buffer_load_dword v{vFLAG}, v{vZ}, s[{SDBG}:{SDBG+3}], 0 offen sc1")
            if S == 8:
                lp = a.newlabel("g1poll")
                ld = a.newlabel("g1done")
                a.label(lp)
                a(f"v_readfirstlane_b32 s{sT0}, v{vFLAG}")
                a(f"s_cmp_ge_u32 s{sT0}, 64")
                a(f"s_cbranch_scc1 {ld}")
                a("s_sleep 2")
                a(f"buffer_load_dword v{vFLAG}, v{vZ}, s[{SDBG}:{SDBG+3}], 0 offen sc1")
                a("s_waitcnt vmcnt(0)")
                a(f"s_branch {lp}")
                a.label(ld)
                a(f"""
                v_and_b32 v{vT2}, 15, v{vL}
                s_lshl_b32 s{sT0}, s{sMT}, 7
                s_lshl_b32 s{sT1}, s{sWT}, 5
                s_add_u32 s{sT0}, s{sT0}, s{sT1}
                s_lshl_b32 s{sT1}, s{sG}, 4
                s_add_u32 s{sT0}, s{sT0}, s{sT1}
                v_add_u32 v{vT2}, s{sT0}, v{vT2}
                v_lshlrev_b32 v{vT2}, 3, v{vT2}
                s_mov_b32 s{sT1}, {WS_STATS}
                buffer_load_dwordx2 v[{vST}:{vST+1}], v{vT2}, s[{SWS}:{SWS+3}], s{sT1} offen sc0 sc1
                v_lshrrev_b32 v{vT1}, 4, v{vL}
                v_lshlrev_b32 v{vT1}, 4, v{vT1}          ; 16*q bytes
                s_mul_i32 s{sT1}, s{sNT}, 576
                s_add_u32 s{sT1}, s{sT1}, {WS_CS}
                s_lshl_b32 s{sT2}, s{sODD}, 6
                v_add_u32 v{vCSA}, s{sT2}, v{vT1}
                s_lshl_b32 s{sT2}, s{sODD}, 9
                s_sub_u32 s{sT2}, 512, s{sT2}
                v_add_u32 v{vCSA8}, s{sT2}, v{vT1}
                """)
                for T in range(8):
                    a(f"buffer_load_dwordx4 {vr(CSV+4*T)}, v{vCSA}, s[{SWS}:{SWS+3}], s{sT1} offen offset:{64*T} sc0 sc1")
                a(f"buffer_load_dwordx4 {vr(CSV+32)}, v{vCSA8}, s[{SWS}:{SWS+3}], s{sT1} offen sc0 sc1")
            rd = reads(S + 1)
        else:
            a("s_waitcnt lgkmcnt(0)")
            rd = []
        mm = mfmas(S)
        i = 0
        for m in mm:
            a(m)
            if i < len(rd):
                a(rd[i]); i += 1
            if i < len(rd) and i < 4:
                a(rd[i]); i += 1
        while i < len(rd):
            a(rd[i]); i += 1

    a("s_barrier")
    a(f"""
    s_mul_i32 s{sT0}, s{sW}, 9216
    v_lshlrev_b32 v{vT0}, 4, v{vL}
    v_add_u32 v{vT1}, s{sT0}, v{vT0}
    s_xor_b32 s{sT1}, s{sW}, 4
    s_mul_i32 s{sT1}, s{sT1}, 9216
    v_add_u32 v{vT2}, s{sT1}, v{vT0}
    s_nop 4
    """)
    for T in range(9):
        a(f"ds_write_b128 v{vT1}, {vr(ACC+8*T+4)} offset:{1024*T}")
    a(f"""
    s_lshl_b32 s{sT0}, s{sMT}, 3
    s_lshl_b32 s{sT1}, s{sWT}, 1
    s_add_u32 s{sT0}, s{sT0}, s{sT1}
    s_add_u32 s{sT0}, s{sT0}, s{sG}          ; t16
    s_mul_i32 s{sT0}, s{sT0}, 54
    s_mul_i32 s{sT1}, s{sNT}, 9
    s_add_u32 s{sT1}, s{sT1}, s{sODD}
    s_lshr_b32 s{sT1}, s{sT1}, 1             ; ks0
    s_add_u32 s{sT0}, s{sT0}, s{sT1}
    s_lshl_b32 s{sT0}, s{sT0}, 10
    v_and_b32 v{vT3}, 15, v{vL}              ; n
    v_lshrrev_b32 v{vT4}, 4, v{vL}           ; q
    v_and_b32 v{vT5}, 1, v{vT4}
    v_lshrrev_b32 v{vT4}, 1, v{vT4}          ; q>>1
    v_lshl_add_u32 v{vHS}, v{vT5}, 1, v{vT4} ; kq' = 2*(q&1) + (q>>1)
    v_lshl_add_u32 v{vHS}, v{vHS}, 4, v{vT3}
    v_lshlrev_b32 v{vHS}, 4, v{vHS}
    v_add_u32 v{vHS}, s{sT0}, v{vHS}
    v_lshl_add_u32 v{vHS8}, v{vT4}, 4, v{vT3}
    v_lshlrev_b32 v{vHS8}, 4, v{vHS8}
    v_lshl_add_u32 v{vHS8}, v{vT5}, 3, v{vHS8}
    s_mul_i32 s{sT1}, s{sODD}, {(-1024-4096+512) & 0xffffffff}
    s_add_u32 s{sT1}, s{sT1}, 4096
    s_add_u32 s{sT0}, s{sT0}, s{sT1}
    v_add_u32 v{vHS8}, s{sT0}, v{vHS8}
    s_waitcnt lgkmcnt(0)
    s_barrier
    """)
    for T in range(9):
        a(f"ds_read_b128 {vr(RCV+4*T)}, v{vT2} offset:{1024*T}")
    a("s_waitcnt vmcnt(0)")
    a(f"v_sub_f32 v{vST}, 0, v{vST}           ; -mean")
    a(f"s_mov_b32 s{sT2}, 0xbfb8aa3b          ; -log2(e)")
    PK = 140
    for T in range(9):
        a(f"s_waitcnt lgkmcnt({8-T})")
        c = ACC + 8 * T
        for r in range(4):
            a(f"v_add_f32 v{c+r}, v{c+r}, v{RCV+4*T+r}")
        for r in range(4):
            a(f"v_fmac_f32 v{c+r}, v{vST}, v{CSV+4*T+r}")
        for r in range(4):
            a(f"v_mul_f32 v{c+r}, v{c+r}, v{vST+1}")
        for r in range(4):
            a(f"v_mul_f32 v{c+4+r}, s{sT2}, v{c+r}")
        for r in range(4):
            a(f"v_exp_f32 v{c+4+r}, v{c+4+r}")
        for r in range(4):
            a(f"v_add_f32 v{c+4+r}, 1.0, v{c+4+r}")
        for r in range(4):
            a(f"v_rcp_f32 v{c+4+r}, v{c+4+r}")
        for r in range(4):
            a(f"v_mul_f32 v{c+r}, v{c+r}, v{c+4+r}")
        P, s = T // 2, T % 2
        if T < 8:
            B = PK + 4 * P
            a(f"v_cvt_pk_bf16_f32 v{B+2*s}, v{c}, v{c+1}")
            a(f"v_cvt_pk_bf16_f32 v{B+2*s+1}, v{c+2}, v{c+3}")
            if s == 1:
                a("s_nop 1")
                a(f"v_permlane16_swap_b32 v{B}, v{B+2}")
                a(f"v_permlane16_swap_b32 v{B+1}, v{B+3}")
                a("s_nop 1")
                a(f"buffer_store_dwordx4 {vr(B)}, v{vHS}, s[{SWS}:{SWS+3}], 0 offen offset:{1024*P}")
        else:
            B = PK + 16
            a(f"v_cvt_pk_bf16_f32 v{B}, v{c}, v{c+1}")
            a(f"v_cvt_pk_bf16_f32 v{B+1}, v{c+2}, v{c+3}")
            a(f"buffer_store_dwordx2 v[{B}:{B+1}], v{vHS8}, s[{SWS}:{SWS+3}], 0 offen")
    a("s_endpgm")


class Track:
    def __init__(self, a, name, maxc):
        self.a, self.name, self.maxc = a, name, maxc
        self.q = []

    def issue(self, text, regs):
        self.a(text)
        self.q.append(set(regs))

    def need(self, regs):
        regs = set(regs)
        last = -1
        for i, s in enumerate(self.q):
            if s & regs:
                last = i
        if last < 0:
            return
        n = len(self.q) - 1 - last
        n = min(n, self.maxc)
        self.a(f"s_waitcnt {self.name}({n})")
        self.q = self.q[len(self.q) - n:] if n else []

    def drain(self):
        self.a(f"s_waitcnt {self.name}(0)")
        self.q = []


def R(b, n=4):
    return list(range(b, b + n))


def k2_conv(a):
    U0, HB, RED = 0, 4608, 4608
    HS = 4160
    vL = 1
    vT0, vT1, vT2, vT3, vT4, vT5 = 2, 3, 4, 5, 6, 7
    vA, vB = 8, 9
    Z = 12
    P, Q, Rr, C0, C2 = 64, 68, 72, 76, 80
    ACC = 32
    AF, BF0, BF1 = 64, 96, 128
    sW, sCH, sT0, sT1, sD = 60, 61, 62, 63, 64
    SH = 28
    a(f"""
    s_sub_u32 s{sCH}, s2, 256
    s_lshl_b32 s{sT0}, s{sCH}, 12
    s_add_u32 s{SH}, s{P_SK}, s{sT0}
    s_addc_u32 s{SH+1}, s{P_SK+1}, 0
    s_and_b32 s{SH+1}, s{SH+1}, 0xffff
    s_mov_b32 s{SH+2}, 4096
    s_mov_b32 s{SH+3}, 0x00020000
    """)
    srd(a, SWS, P_WS, WS_SIZE)
    srd(a, SDBG, P_DBG, 256)
    a(f"""
    v_lshlrev_b32 v{vT0}, 4, v0
    buffer_load_dwordx4 {vr(P)}, v{vT0}, s[{SH}:{SH+3}], 0 offen
    buffer_load_dwordx4 {vr(Q)}, v{vT0}, s[{SH}:{SH+3}], 0 offen offset:4
    buffer_load_dwordx4 {vr(Rr)}, v{vT0}, s[{SH}:{SH+3}], 0 offen offset:8
    v_and_b32 v{vL}, 63, v0
    v_lshrrev_b32 v{vT1}, 6, v0
    s_lshr_b32 s{sT1}, s{sCH}, 1
    v_readfirstlane_b32 s{sW}, v{vT1}
    s_lshl_b32 s{sT1}, s{sT1}, 2
    s_add_u32 s{sT0}, s{sT0}, {WS_UR}
    s_load_dword s{sD}, s[{P_SD}:{P_SD+1}], s{sT1}
    s_lshl_b32 m0, s{sW}, 10
    v_mov_b32 v{Z}, 0
    buffer_load_dwordx4 v{vT0}, s[{SWS}:{SWS+3}], s{sT0} offen lds
    v_mov_b32 v{Z+1}, 0
    v_mov_b32 v{Z+2}, 0
    v_mov_b32 v{Z+3}, 0
    v_cmp_gt_u32 vcc, 32, v0
    s_and_saveexec_b64 s[66:67], vcc
    ds_write_b128 v{vT0}, {vr(Z)} offset:{U0+4096}
    s_mov_b64 exec, s[66:67]
    """)
    for i in range(32):
        a(f"v_mov_b32 v{ACC+i}, 0")
    a(f"""
    v_and_b32 v{vT1}, 15, v{vL}              ; i / n
    v_lshrrev_b32 v{vT2}, 4, v{vL}           ; kq
    v_and_b32 v{vT3}, 3, v{vT1}
    v_mul_u32_u24 v{vA}, {HS}, v{vT3}
    v_lshrrev_b32 v{vT3}, 2, v{vT1}
    v_lshl_add_u32 v{vA}, v{vT3}, 3, v{vA}
    v_lshl_add_u32 v{vA}, v{vT2}, 4, v{vA}
    s_lshl_b32 s{sT1}, s{sW}, 7
    s_add_u32 s{sT0}, s{sT1}, {HB}
    v_add_u32 v{vA}, s{sT0}, v{vA}
    v_lshlrev_b32 v{vB}, 4, v{vT2}
    v_lshlrev_b32 v{vT3}, 5, v{vT1}
    v_sub_u32 v{vB}, v{vB}, v{vT3}
    s_add_u32 s{sT0}, s{sT1}, {U0+480}
    v_add_u32 v{vB}, s{sT0}, v{vB}
    s_waitcnt vmcnt(1)
    """)
    for k in range(4):
        a(f"v_alignbit_b32 v{C0+k}, v{Q+k}, v{P+k}, 16")
    for k in range(4):
        a(f"v_alignbit_b32 v{C2+k}, v{Rr+k}, v{Q+k}, 16")
    a(f"""
    ds_write_b128 v{vT0}, {vr(C0)} offset:{HB+32}
    ds_write_b128 v{vT0}, {vr(Q)} offset:{HB+HS+32}
    ds_write_b128 v{vT0}, {vr(C2)} offset:{HB+2*HS+32}
    ds_write_b128 v{vT0}, {vr(Rr)} offset:{HB+3*HS+32}
    v_cmp_eq_u32 vcc, 0, v0
    s_and_saveexec_b64 s[66:67], vcc
    v_lshlrev_b32 v{vT3}, 16, v{P}
    v_mov_b32 v{vT2}, 0
    v_mov_b32 v{vT4}, 0
    v_mov_b32 v{vT5}, v{P}
    v_mov_b32 v10, v{vT3}
    v_mov_b32 v11, v{C0}
    """)
    for c in range(4):
        a(f"ds_write_b128 v{vT0}, {vr(Z)} offset:{HB+c*HS}")
        a(f"ds_write_b64 v{vT0}, v[{Z}:{Z+1}] offset:{HB+c*HS+16}")
    a(f"""
    ds_write_b64 v{vT0}, v[{vT2}:{vT3}] offset:{HB+24}
    ds_write_b64 v{vT0}, v[{vT4}:{vT5}] offset:{HB+HS+24}
    ds_write_b64 v{vT0}, v[10:11] offset:{HB+2*HS+24}
    ds_write_b64 v{vT0}, v[{P}:{P+1}] offset:{HB+3*HS+24}
    s_mov_b64 exec, s[66:67]
    s_waitcnt vmcnt(0) lgkmcnt(0)
    s_barrier
    """)
    lg = Track(a, "lgkmcnt", 15)

    def rdA(e, p):
        b = AF + 4 * p
        lg.issue(f"ds_read_b64 v[{b}:{b+1}], v{vA} offset:{64*e+512*p}", R(b, 2))
        lg.issue(f"ds_read_b64 v[{b+2}:{b+3}], v{vA} offset:{64*e+512*p+8}", R(b + 2, 2))

    def rdB(e, q):
        b = (BF0, BF1)[e] + 4 * q
        lg.issue(f"ds_read_b128 {vr(b)}, v{vB} offset:{512*(7-q)+64*e}", R(b))

    for k in range(8):
        rdA(0, 7 - k)
        rdB(0, k)
    for e in range(2):
        BF = (BF0, BF1)[e]
        for p in range(7, -1, -1):
            for q in range(0, 8 - p):
                j = p + q
                lg.need(R(AF + 4 * p) + R(BF + 4 * q))
                a(f"v_mfma_f32_16x16x32_bf16 {vr(ACC+4*j)}, {vr(AF+4*p)}, {vr(BF+4*q)}, {vr(ACC+4*j)}")
            if e == 0:
                rdA(1, p)
                rdB(1, 7 - p)
    a(f"""
    s_barrier
    v_lshlrev_b32 v{vT0}, 4, v{vL}
    s_lshl_b32 s{sT0}, s{sW}, 13
    v_add_u32 v{vT1}, s{sT0}, v{vT0}
    s_lshl_b32 s{sT0}, s{sW}, 11
    v_add_u32 v{vT2}, s{sT0}, v{vT0}
    s_nop 3
    """)
    for j in range(8):
        a(f"ds_write_b128 v{vT1}, {vr(ACC+4*j)} offset:{RED+1024*j}")
    a(f"""
    v_and_b32 v{vT3}, 15, v{vL}
    v_lshrrev_b32 v{vT4}, 4, v{vL}
    v_lshlrev_b32 v{vT3}, 5, v{vT3}
    v_lshl_add_u32 v{vT3}, v{vT4}, 3, v{vT3}     ; 32n + 8qq
    s_lshl_b32 s{sT0}, s{sW}, 10
    s_sub_u32 s{sT1}, {U0+4088-512}, s{sT0}
    v_sub_u32 v{vT4}, s{sT1}, v{vT3}
    v_add_u32 v{vT3}, s{sT0}, v{vT3}
    ds_read_b64 v[24:25], v{vT4} offset:512
    ds_read_b64 v[26:27], v{vT4}
    s_and_b32 s{sT0}, s{sCH}, 1
    s_lshl_b32 s{sT0}, s{sT0}, 4
    s_lshr_b32 s{sD}, s{sD}, s{sT0}
    s_lshl_b32 s{sD}, s{sD}, 16                  ; D as f32
    s_waitcnt lgkmcnt(0)
    s_barrier
    """)
    S = 64
    for jj in range(2):
        for src in range(4):
            a(f"ds_read_b128 {vr(S+16*jj+4*src)}, v{vT2} offset:{RED+8192*src+1024*jj}")
    a(f"s_lshl_b32 s{sT0}, s{sCH}, 12")
    a(f"s_add_u32 s{sT0}, s{sT0}, {WS_YT}")
    for jj in range(2):
        a(f"s_waitcnt lgkmcnt({4*(1-jj)})")
        b = S + 16 * jj
        for r in range(4):
            a(f"v_add_f32 v{b+r}, v{b+r}, v{b+4+r}")
            a(f"v_add_f32 v{b+8+r}, v{b+8+r}, v{b+12+r}")
        for r in range(4):
            a(f"v_add_f32 v{b+r}, v{b+r}, v{b+8+r}")
        d0, d1 = 24 + 2 * jj, 25 + 2 * jj
        a(f"v_and_b32 v{b+4}, 0xffff0000, v{d1}     ; u0")
        a(f"v_lshlrev_b32 v{b+5}, 16, v{d1}         ; u1")
        a(f"v_and_b32 v{b+6}, 0xffff0000, v{d0}     ; u2")
        a(f"v_lshlrev_b32 v{b+7}, 16, v{d0}         ; u3")
        for r in range(4):
            a(f"v_mul_f32 v{b+4+r}, s{sD}, v{b+4+r}")
        a(f"v_cvt_pk_bf16_f32 v{b+8}, v{b}, v{b+1}")
        a(f"v_cvt_pk_bf16_f32 v{b+9}, v{b+2}, v{b+3}")
        a(f"v_cvt_pk_bf16_f32 v{b+10}, v{b+4}, v{b+5}")
        a(f"v_cvt_pk_bf16_f32 v{b+11}, v{b+6}, v{b+7}")
        for h in range(2):
            a(f"v_lshlrev_b32 v{b+2*h}, 16, v{b+8+h}")
            a(f"v_and_b32 v{b+2*h+1}, 0xffff0000, v{b+8+h}")
            a(f"v_lshlrev_b32 v{b+4+2*h}, 16, v{b+10+h}")
            a(f"v_and_b32 v{b+4+2*h+1}, 0xffff0000, v{b+10+h}")
        for r in range(4):
            a(f"v_add_f32 v{b+r}, v{b+r}, v{b+4+r}")
        a(f"v_cvt_pk_bf16_f32 v{b+12}, v{b}, v{b+1}")
        a(f"v_cvt_pk_bf16_f32 v{b+13}, v{b+2}, v{b+3}")
        a(f"buffer_store_dwordx2 v[{b+12}:{b+13}], v{vT3}, s[{SWS}:{SWS+3}], s{sT0} offen offset:{512*jj} sc0 sc1")
    le = a.newlabel("cvend")
    a(f"""
    s_waitcnt vmcnt(0)
    s_barrier
    s_cmp_lg_u32 s{sW}, 0
    s_cbranch_scc1 {le}
    s_mul_i32 s{sT0}, s{sCH}, 52429
    s_lshr_b32 s{sT0}, s{sT0}, 22
    s_lshl_b32 s{sT0}, s{sT0}, 5
    v_mov_b32 v{vT0}, 1
    v_mov_b32 v{vT1}, s{sT0}
    v_cmp_eq_u32 vcc, 0, v{vL}
    s_and_saveexec_b64 s[66:67], vcc
    buffer_atomic_add v{vT0}, v{vT1}, s[{SDBG}:{SDBG+3}], 0 offen sc1
    """)
    a.label(le)
    a("s_endpgm")


def k2_gemm2(a):
    XT, RA = 0, 10240
    vL = 1
    vT0, vT1, vT2, vT3, vT4, vT5 = 2, 3, 4, 5, 6, 7
    vH = (8, 9, 10, 11)
    vW4, vFLAG, vST = 12, 13, 14
    ACC = 16
    FR = (96, 132)
    sW, sTT, sDT, sT0, sT1, sT2, sHo, sWo, sN = 60, 61, 62, 63, 64, 65, 68, 69, 70
    SOUT = 32
    srd(a, SX, P_Q, 2621440)
    srd(a, SOUT, P_OUT, 2621440)
    srd(a, SWS, P_WS, WS_SIZE)
    srd(a, SDBG, P_DBG, 256)
    a(f"""
    v_and_b32 v{vL}, 63, v0
    v_lshrrev_b32 v{vT0}, 6, v0
    s_and_b32 s{sT0}, s2, 7
    v_readfirstlane_b32 s{sW}, v{vT0}
    s_lshr_b32 s{sT1}, s2, 3                 ; s 0..31
    s_lshr_b32 s{sTT}, s{sT0}, 1
    s_lshl_b32 s{sTT}, s{sTT}, 3
    s_and_b32 s{sT2}, s{sT1}, 7
    s_add_u32 s{sTT}, s{sTT}, s{sT2}         ; tt64
    s_and_b32 s{sDT}, s{sT0}, 1
    s_lshl_b32 s{sDT}, s{sDT}, 2
    s_lshr_b32 s{sT2}, s{sT1}, 3
    s_add_u32 s{sDT}, s{sDT}, s{sT2}         ; dt
    s_min_u32 s{sT0}, s{sW}, 2
    s_mul_i32 s{sT1}, s{sW}, 13
    s_add_u32 s{sT0}, s{sT0}, s{sT1}         ; ks0
    s_mul_i32 s{sHo}, s{sTT}, 216
    s_add_u32 s{sHo}, s{sHo}, s{sT0}
    s_lshl_b32 s{sHo}, s{sHo}, 10
    s_mul_i32 s{sWo}, s{sT0}, 40
    s_mul_i32 s{sT1}, s{sDT}, 5
    s_add_u32 s{sWo}, s{sWo}, s{sT1}
    s_lshl_b32 s{sWo}, s{sWo}, 10
    s_add_u32 s{sWo}, s{sWo}, {WS_W2F}
    v_lshlrev_b32 v{vT0}, 4, v{vL}
    v_add_u32 v{vW4}, 4096, v{vT0}
    """)
    for ap in range(4):
        a(f"s_xor_b32 s{sT0}, s{sW}, {ap}")
        a(f"s_mul_i32 s{sT0}, s{sT0}, 55296")
        a(f"v_add_u32 v{vH[ap]}, s{sT0}, v{vT0}")
    vm = Track(a, "vmcnt", 63)
    vW0 = vT0

    def ld_h(i, ap):
        b = FR[i & 1] + 4 * ap
        vm.issue(f"buffer_load_dwordx4 {vr(b)}, v{vH[ap]}, s[{SWS}:{SWS+3}], s{sHo} offen", R(b))

    def ld_w(i, bb):
        b = FR[i & 1] + 16 + 4 * bb
        if bb < 4:
            vm.issue(f"buffer_load_dwordx4 {vr(b)}, v{vW0}, s[{SWS}:{SWS+3}], s{sWo} offen offset:{1024*bb}", R(b))
        else:
            vm.issue(f"buffer_load_dwordx4 {vr(b)}, v{vW4}, s[{SWS}:{SWS+3}], s{sWo} offen", R(b))

    def adv():
        a(f"s_add_u32 s{sHo}, s{sHo}, 1024")
        a(f"s_add_u32 s{sWo}, s{sWo}, 40960")

    for i in range(2):
        for ap in range(4):
            ld_h(i, ap)
        for bb in range(5):
            ld_w(i, bb)
        adv()
    lx = a.newlabel("g2x")
    a(f"""
    s_mul_i32 s{sT0}, s{sTT}, {64*1280}
    s_mul_i32 s{sT1}, s{sDT}, 160
    s_add_u32 s{sT0}, s{sT0}, s{sT1}
    s_lshl_b32 s{sT2}, s{sW}, 10
    """)
    for i in range(3):
        if i == 2:
            a(f"s_cmp_ge_u32 s{sW}, 2")
            a(f"s_cbranch_scc1 {lx}")
        a(f"""
        v_add_u32 v{vT1}, {256*i}, v0
        v_mul_u32_u24 v{vT2}, 6554, v{vT1}
        v_lshrrev_b32 v{vT2}, 16, v{vT2}         ; row
        v_mul_u32_u24 v{vT3}, 10, v{vT2}
        v_sub_u32 v{vT3}, v{vT1}, v{vT3}         ; chunk
        v_mul_u32_u24 v{vT2}, 1280, v{vT2}
        v_lshl_add_u32 v{vT2}, v{vT3}, 4, v{vT2}
        s_add_u32 m0, s{sT2}, {XT+4096*i}
        s_nop 0
        buffer_load_dwordx4 v{vT2}, s[{SX}:{SX+3}], s{sT0} offen lds
        """)
        if i < 2:
            vm.q.append(set())
    a.label(lx)
    a(f"""
    v_and_b32 v{vT1}, 15, v{vL}
    s_lshl_b32 s{sT0}, s{sTT}, 6
    s_lshl_b32 s{sT1}, s{sW}, 4
    s_add_u32 s{sT0}, s{sT0}, s{sT1}
    v_add_u32 v{vT1}, s{sT0}, v{vT1}             ; t
    v_lshlrev_b32 v{vT1}, 3, v{vT1}
    s_mov_b32 s{sT1}, {WS_STATS}
    """)
    vm.issue(f"buffer_load_dwordx2 v[{vST}:{vST+1}], v{vT1}, s[{SWS}:{SWS+3}], s{sT1} offen", R(vST, 2))
    for i in range(80):
        a(f"v_mov_b32 v{ACC+i}, 0")
    NIT = 14
    lskip = a.newlabel("g2skip")
    for i in range(NIT):
        F = FR[i & 1]
        more = i + 2 < NIT
        if i == NIT - 1:
            a(f"s_cmp_ge_u32 s{sW}, 2")
            a(f"s_cbranch_scc1 {lskip}")
        for bb in range(5):
            for ap in range(4):
                vm.need(R(F + 4 * ap) + R(F + 16 + 4 * bb))
                c = ACC + 20 * ap + 4 * bb
                a(f"v_mfma_f32_16x16x32_bf16 {vr(c)}, {vr(F+16+4*bb)}, {vr(F+4*ap)}, {vr(c)}")
            if more:
                ld_w(i + 2, bb)
        if more:
            for ap in range(4):
                ld_h(i + 2, ap)
            adv()
    a.label(lskip)
    vm.drain()
    lp = a.newlabel("g2poll")
    ld = a.newlabel("g2done")
    a(f"s_lshl_b32 s{sT0}, s{sDT}, 5")
    a(f"v_mov_b32 v{vT1}, s{sT0}")
    a.label(lp)
    a(f"""
    buffer_load_dword v{vFLAG}, v{vT1}, s[{SDBG}:{SDBG+3}], 0 offen sc1
    s_waitcnt vmcnt(0)
    v_readfirstlane_b32 s{sT0}, v{vFLAG}
    s_cmp_ge_u32 s{sT0}, 80
    s_cbranch_scc1 {ld}
    s_sleep 2
    s_branch {lp}
    """)
    a.label(ld)
    YR = 96
    RC = 108
    a(f"""
    v_lshrrev_b32 v{vT1}, 1, v{vL}
    v_lshlrev_b32 v{vT1}, 12, v{vT1}
    v_and_b32 v{vT2}, 1, v{vL}
    v_lshl_add_u32 v{vT1}, v{vT2}, 4, v{vT1}
    s_mul_i32 s{sT0}, s{sDT}, {80*4096}
    s_lshl_b32 s{sT1}, s{sTT}, 7
    s_add_u32 s{sT0}, s{sT0}, s{sT1}
    s_lshl_b32 s{sT1}, s{sW}, 5
    s_add_u32 s{sT0}, s{sT0}, s{sT1}
    s_add_u32 s{sT0}, s{sT0}, {WS_YT}
    buffer_load_dwordx4 {vr(YR)}, v{vT1}, s[{SWS}:{SWS+3}], s{sT0} offen sc0 sc1
    s_add_u32 s{sT0}, s{sT0}, {32*4096}
    buffer_load_dwordx4 {vr(YR+4)}, v{vT1}, s[{SWS}:{SWS+3}], s{sT0} offen sc0 sc1
    s_add_u32 s{sT0}, s{sT0}, {32*4096}
    buffer_load_dwordx4 {vr(YR+8)}, v{vT1}, s[{SWS}:{SWS+3}], s{sT0} offen sc0 sc1
    s_mul_i32 s{sT0}, s{sW}, 5120
    v_add_u32 v{vT1}, s{sT0}, v{vW0}
    s_xor_b32 s{sT1}, s{sW}, 2
    s_mul_i32 s{sT1}, s{sT1}, 5120
    v_add_u32 v{vT2}, s{sT1}, v{vW0}
    s_xor_b32 s{sT1}, s{sW}, 3
    s_mul_i32 s{sT1}, s{sT1}, 5120
    v_add_u32 v{vT3}, s{sT1}, v{vW0}
    """)
    for h in range(2):
        for bb in range(5):
            a(f"ds_write_b128 v{vT1}, {vr(ACC+20*(2+h)+4*bb)} offset:{RA+20480*h+1024*bb}")
    a("s_waitcnt lgkmcnt(0)")
    a("s_barrier")
    for h in (1, 0):
        for bb in range(5):
            a(f"ds_read_b128 {vr(RC+20*h+4*bb)}, v{vT2} offset:{RA+20480*h+1024*bb}")
    for bb in range(5):
        a(f"s_waitcnt lgkmcnt({9-bb})")
        for r in range(4):
            a(f"v_add_f32 v{ACC+20+4*bb+r}, v{ACC+20+4*bb+r}, v{RC+20+4*bb+r}")
    a("s_waitcnt lgkmcnt(0)")
    for bb in range(5):
        a(f"ds_write_b128 v{vT2}, {vr(ACC+20+4*bb)} offset:{RA+1024*bb}")
    for i in range(20):
        a(f"v_add_f32 v{ACC+i}, v{ACC+i}, v{RC+i}")
    a("s_waitcnt vmcnt(0)")
    for i in range(3):
        a(f"ds_write_b128 v{vT2}, {vr(YR+4*i)} offset:{RA+20480+1024*i}")
    a(f"""
    v_lshrrev_b32 v{vT4}, 1, v{vW0}
    s_xor_b32 s{sT1}, s{sW}, 2
    s_mul_i32 s{sT1}, s{sT1}, 5120
    v_add_u32 v{vT4}, s{sT1}, v{vT4}
    v_and_b32 v{vT5}, 15, v{vL}
    s_lshl_b32 s{sT0}, s{sW}, 4
    v_add_u32 v{vT1}, s{sT0}, v{vT5}
    v_mul_u32_u24 v{vT5}, 160, v{vT1}
    v_lshrrev_b32 v8, 4, v{vL}                   ; q
    v_lshl_add_u32 v{vT5}, v8, 3, v{vT5}
    s_lshl_b32 s{sT0}, s{sTT}, 6
    v_add_u32 v{vT1}, s{sT0}, v{vT1}             ; t
    v_mul_u32_u24 v9, 1280, v{vT1}
    v_lshl_add_u32 v10, v8, 3, v9                ; single: + 8q
    v_and_b32 v11, 1, v8
    v_lshrrev_b32 v8, 1, v8
    v_lshl_add_u32 v8, v11, 1, v8                ; kq'
    v_lshl_add_u32 v9, v8, 4, v9
    s_mul_i32 s{sT2}, s{sDT}, 160
    s_waitcnt lgkmcnt(0)
    s_barrier
    """)
    XR, YT = 148, 158
    for bb in range(5):
        a(f"ds_read_b128 {vr(RC+4*bb)}, v{vT3} offset:{RA+1024*bb}")
        a(f"ds_read_b64 v[{XR+2*bb}:{XR+2*bb+1}], v{vT5} offset:{XT+32*bb}")
        a(f"ds_read_b64_tr_b16 v[{YT+2*bb}:{YT+2*bb+1}], v{vT4} offset:{RA+20480+512*bb}")
    a(f"s_mov_b32 s{sT0}, 0xbfb8aa3b")
    E = 36
    PK = 96
    for bb in range(5):
        a(f"s_waitcnt lgkmcnt({3*(4-bb)})")
        c = ACC + 4 * bb
        e, xf, yf = E, E + 4, E + 8
        for r in range(4):
            a(f"v_add_f32 v{c+r}, v{c+r}, v{RC+4*bb+r}")
        for r in range(4):
            a(f"v_mul_f32 v{e+r}, s{sT0}, v{c+r}")
        for r in range(4):
            a(f"v_exp_f32 v{e+r}, v{e+r}")
        for h in range(2):
            a(f"v_lshlrev_b32 v{xf+2*h}, 16, v{XR+2*bb+h}")
            a(f"v_and_b32 v{xf+2*h+1}, 0xffff0000, v{XR+2*bb+h}")
        for r in range(4):
            a(f"v_add_f32 v{e+r}, 1.0, v{e+r}")
        for r in range(4):
            a(f"v_rcp_f32 v{e+r}, v{e+r}")
        for h in range(2):
            a(f"v_lshlrev_b32 v{yf+2*h}, 16, v{YT+2*bb+h}")
            a(f"v_and_b32 v{yf+2*h+1}, 0xffff0000, v{YT+2*bb+h}")
        for r in range(4):
            a(f"v_mul_f32 v{c+r}, v{c+r}, v{e+r}          ; g")
        for r in range(4):
            a(f"v_sub_f32 v{e+r}, v{xf+r}, v{vST}")
        for r in range(4):
            a(f"v_mul_f32 v{e+r}, v{e+r}, v{vST+1}        ; xn")
        for r in range(4):
            a(f"v_mul_f32 v{e+r}, v{e+r}, v{yf+r}")
        for r in range(4):
            a(f"v_fmac_f32 v{xf+r}, v{e+r}, v{c+r}")
        P, s = bb // 2, bb % 2
        if bb < 4:
            B = PK + 4 * P
            a(f"v_cvt_pk_bf16_f32 v{B+2*s}, v{xf}, v{xf+1}")
            a(f"v_cvt_pk_bf16_f32 v{B+2*s+1}, v{xf+2}, v{xf+3}")
            if s == 1:
                a("s_nop 1")
                a(f"v_permlane16_swap_b32 v{B}, v{B+2}")
                a(f"v_permlane16_swap_b32 v{B+1}, v{B+3}")
                a("s_nop 1")
                a(f"buffer_store_dwordx4 {vr(B)}, v9, s[{SOUT}:{SOUT+3}], s{sT2} offen offset:{64*P}")
        else:
            B = PK + 8
            a(f"v_cvt_pk_bf16_f32 v{B}, v{xf}, v{xf+1}")
            a(f"v_cvt_pk_bf16_f32 v{B+1}, v{xf+2}, v{xf+3}")
            a(f"buffer_store_dwordx2 v[{B}:{B+1}], v10, s[{SOUT}:{SOUT+3}], s{sT2} offen offset:128")
    a("s_endpgm")


def kernel2(a):
    a.l.append(f".globl k2_kernel\n.p2align 8\n.type k2_kernel,@function\nk2_kernel:")
    a("s_cmp_ge_u32 s2, 896")
    a("s_cbranch_scc1 k2_exit")
    load_ptrs(a)
    a("s_waitcnt lgkmcnt(0)")
    a("s_cmp_ge_u32 s2, 256")
    a("s_cbranch_scc1 k2_conv")
    k2_gemm2(a)
    a.label("k2_conv")
    k2_conv(a)
    a.label("k2_exit")
    a("s_endpgm")


def kernel1(a):
    a.l.append(f".globl k1_kernel\n.p2align 8\n.type k1_kernel,@function\nk1_kernel:")
    a("s_cmp_ge_u32 s2, 256")
    a("s_cbranch_scc1 k1_exit")
    load_ptrs(a)
    a("s_waitcnt lgkmcnt(0)")
    a("s_cmp_ge_u32 s2, 64")
    a("s_cbranch_scc1 k1_gemm")
    k1_prep(a)
    a.label("k1_gemm")
    k1_gemm1(a)
    a.label("k1_exit")
    a("s_endpgm")


def desc(name, vgpr, sgpr=96):
    return f""".p2align 6
.amdhsa_kernel {name}
  .amdhsa_next_free_vgpr {vgpr}
  .amdhsa_next_free_sgpr {sgpr}
  .amdhsa_accum_offset {(vgpr+3)//4*4}
  .amdhsa_group_segment_fixed_size 0
  .amdhsa_kernarg_size 96
  .amdhsa_user_sgpr_count 2
  .amdhsa_user_sgpr_kernarg_segment_ptr 1
  .amdhsa_system_sgpr_workgroup_id_x 1
.end_amdhsa_kernel
"""


def main():
    out = sys.argv[1] if len(sys.argv) > 1 else f"cdna_kernels/{NAME}.s"
    a = A()
    hdr = f"""; generated by dev/gen.py
; @launch kernel=k1_kernel grid=(256,1,1) block=(512,1,1) lds={4*SLOT}
; @launch kernel=k2_kernel grid=(896,1,1) block=(256,1,1) lds=53760
.amdgcn_target "amdgcn-amd-amdhsa--gfx950"
.text
"""
    kernel1(a)
    kernel2(a)
    txt = hdr + a.text() + '.section .rodata,"a"\n' + desc("k1_kernel", 256) + desc("k2_kernel", 168)
    open(out, "w").write(txt)


if __name__ == "__main__":
    main()
```
